```python
import torch

def _softmax(x, axis=-1):
    return torch.softmax(x, dim=axis)
def _gelu(x):
    return torch.nn.functional.gelu(x, approximate="tanh")
def _silu(x):
    return torch.nn.functional.silu(x)
def _sigmoid(x):
    return torch.sigmoid(x)
def _layernorm(x, axis=-1, eps=1e-5):
    m = x.mean(dim=axis, keepdim=True)
    v = x.var(dim=axis, keepdim=True, unbiased=False)
    return (x - m) / torch.sqrt(v + eps)
def _scatter_add(tgt, idx, src, axis=0):
    return tgt.clone().index_add_(axis, idx, src)
def _segment_sum(src, seg, n):
    out = torch.zeros((n,) + src.shape[1:], dtype=src.dtype)
    return out.index_add_(0, seg, src)
def _pad(x, pw):
    flat = tuple(v for pair in reversed(pw) for v in pair)
    return torch.nn.functional.pad(x, flat)

kernel_name = 'parallel_sum__linear_kernel_hedgehog__dense_activation_squared_relu__prompt'

def setup_inputs():

    _w = (lambda a: (lambda t: t.to(torch.bfloat16) if t.is_floating_point() else t)(torch.as_tensor(a)))
    def _A_setup():
        B, S, D, H = 1, 2048, 640, 32
        Dh = D // H
        return {
            "x": _w((lambda *s: torch.randn(*s, dtype=torch.bfloat16) * 0.05)(B, S, D)),
            "wqkv": _w((lambda *s: torch.randn(*s, dtype=torch.bfloat16) * 0.8)(D, 3 * D)),
            "w_phi": _w((lambda *s: torch.randn(*s, dtype=torch.bfloat16) * 0.8)(H, Dh, Dh) * (Dh ** -0.5)),
            "wo": _w((lambda *s: torch.randn(*s, dtype=torch.bfloat16) * 0.2)(D, D)),
        }
    _A_in = _A_setup()

    def _B_setup():
        B, S, D, F = 1, 2048, 640, 1536
        return {
            "x": _w((lambda *s: torch.randn(*s, dtype=torch.bfloat16) * 0.05)(B, S, D)),
            "w1": _w((lambda *s: torch.randn(*s, dtype=torch.bfloat16) * 0.05)(D, F)),
            "b1": _w((lambda *s: torch.randn(*s, dtype=torch.bfloat16) * 0.8)(F)),
            "w2": _w((lambda *s: torch.randn(*s, dtype=torch.bfloat16) * 0.05)(F, D)),
            "b2": _w((lambda *s: torch.randn(*s, dtype=torch.bfloat16) * 3.2)(D)),
        }
    _B_in = _B_setup()

    return {
        "A_x": _A_in["x"],
        "A_wqkv": _A_in["wqkv"],
        "A_w_phi": _A_in["w_phi"],
        "A_wo": _A_in["wo"],
        "B_x": _B_in["x"],
        "B_w1": _B_in["w1"],
        "B_b1": _B_in["b1"],
        "B_w2": _B_in["w2"],
        "B_b2": _B_in["b2"],
    }

def reference(A_x, A_wqkv, A_w_phi, A_wo, B_x, B_w1, B_b1, B_w2, B_b2):
    def _A_ref(x, wqkv, w_phi, wo):
        B, S, D = x.shape
        H = 32; Dh = D // H
        qkv = (lambda x, *d: x.permute(*d))((x @ wqkv).reshape(B, S, 3, H, Dh), 2, 0, 3, 1, 4)
        q, k, v = qkv[0], qkv[1], qkv[2]
        pq = torch.einsum("bhsd,hdf->bhsf", q, w_phi)
        pk = torch.einsum("bhsd,hdf->bhsf", k, w_phi)
        phi_q = torch.concatenate([_softmax(pq, axis=-1), _softmax(-pq, axis=-1)], axis=-1)
        phi_k = torch.concatenate([_softmax(pk, axis=-1), _softmax(-pk, axis=-1)], axis=-1)
        kv = torch.einsum("bhsf,bhsd->bhfd", phi_k, v)
        z  = torch.einsum("bhsf->bhf", phi_k)
        num = torch.einsum("bhqf,bhfd->bhqd", phi_q, kv)
        den = torch.einsum("bhqf,bhf->bhq", phi_q, z)[..., None] + 1e-6
        o = num / den
        return (lambda x, *d: x.permute(*d))(o, 0, 2, 1, 3).reshape(B, S, D) @ wo

    def _B_ref(x, w1, b1, w2, b2):
        h = torch.einsum("bsd,df->bsf", x, w1) + b1
        zero = torch.zeros_like(h)
        r = torch.where(h > zero, h, zero)
        h = r * r
        out = torch.einsum("bsf,fd->bsd", h, w2) + b2
        return out

    x = A_x
    xn = _layernorm(x, axis=-1)
    return x + _A_ref(xn, A_wqkv, A_w_phi, A_wo) + _B_ref(xn, B_w1, B_b1, B_w2, B_b2)
```

```python
import re

REG_RE = re.compile(r'^(-|abs\()?\|?([vas])(\d+|\[(\d+):(\d+)\])\|?\)?$')
TRANS = ('v_exp_f32', 'v_log_f32', 'v_rcp_f32', 'v_rsq_f32', 'v_sqrt_f32', 'v_sin_f32', 'v_cos_f32', 'v_rcp_iflag_f32')

def regs_of(op):
    op = op.strip()
    if op in ('vcc',): return [('s', 'vcc')]
    if op in ('vcc_lo', 'vcc_hi'): return [('s', 'vcc')]
    if op == 'exec': return [('s', 'exec')]
    if op == 'm0': return [('s', 'm0')]
    m = REG_RE.match(op)
    if not m: return []
    k = m.group(2)
    if m.group(4) is not None:
        return [(k, r) for r in range(int(m.group(4)), int(m.group(5)) + 1)]
    return [(k, int(m.group(3)))]

def parse(text):
    t = text.split(';')[0].strip()
    parts = t.split(None, 1)
    mn = parts[0]
    rest = parts[1] if len(parts) > 1 else ''
    ops = []
    for o in rest.split(','):
        o = o.strip()
        if o: ops.append(o)
    clean = []
    for o in ops:
        clean.append(o.split()[0])
    return mn, clean, rest

class Ins:
    __slots__ = ('text', 'mn', 'cls', 'wr', 'rd', 'srcc', 'ab', 'dpp', 'wide_store', 'sdwa')
    def __init__(self, text):
        self.text = text
        mn, ops, rest = parse(text)
        self.mn = mn; self.wr = []; self.rd = []; self.srcc = []; self.ab = []
        self.dpp = False; self.wide_store = []; self.sdwa = False
        R = [regs_of(o) for o in ops]
        flat = lambda L: [x for l in L for x in l]
        if mn.startswith('v_mfma'):
            self.cls = 'mfma'; self.wr = R[0]; self.ab = R[1] + R[2]; self.srcc = R[3]; self.rd = self.ab + self.srcc
        elif mn.startswith('v_'):
            self.cls = 'valu'
            self.dpp = ('_dpp' in mn) or ('row_' in rest) or ('quad_perm' in rest)
            self.sdwa = ('_sdwa' in mn and 'dst_sel:DWORD' not in rest)
            if mn.startswith('v_permlane') or mn.startswith('v_swap'):
                self.wr = R[0] + R[1]; self.rd = R[0] + R[1]
            elif mn.startswith(('v_add_co', 'v_sub_co', 'v_addc_co', 'v_subb_co', 'v_subrev_co')):
                self.wr = R[0] + R[1]; self.rd = flat(R[2:])
            else:
                self.wr = R[0]; self.rd = flat(R[1:])
                if mn.startswith(('v_fmac', 'v_dot2c', 'v_pk_fmac', 'v_writelane')) or self.dpp: self.rd = self.rd + R[0]
                if mn.startswith('v_cndmask') and len(ops) == 3: self.rd = self.rd + [('s', 'vcc')]
        elif mn.startswith('ds_'):
            self.cls = 'ds'
            if mn.startswith(('ds_read', 'ds_bpermute', 'ds_permute', 'ds_swizzle')):
                self.wr = R[0]; self.rd = flat(R[1:])
            else:
                self.rd = flat(R)
        elif mn.startswith(('buffer_', 'global_')):
            self.cls = 'vmem'
            islds = bool(re.search(r'\blds\b', rest)) or '_lds_' in mn
            if mn.startswith(('buffer_inv', 'buffer_wbl2')):
                pass
            elif 'load' in mn and not islds:
                self.wr = R[0]; self.rd = flat(R[1:])
            else:
                self.rd = flat(R)
                if islds: self.rd = self.rd + [('s', 'm0')]
                if 'atomic' in mn and re.search(r'\bsc0\b', rest): self.wr = R[0]
                if 'store' in mn and ('x3' in mn or 'x4' in mn):
                    self.wide_store = R[0] if mn.startswith('buffer_') else R[1]
        elif mn.startswith('s_'):
            self.cls = 'salu'
            if mn.startswith(('s_cmp', 's_cbranch', 's_branch', 's_waitcnt', 's_barrier', 's_nop', 's_sleep', 's_endpgm', 's_setprio', 's_bitcmp')):
                self.rd = flat(R)
            else:
                self.wr = R[0] if R else []; self.rd = flat(R[1:])
                if 'saveexec' in mn: self.wr = self.wr + [('s', 'exec')]
        else:
            raise ValueError('unknown instr ' + text)

def mfma_passes(mn):
    if '32x32x16' in mn or '32x32x8' in mn: return 8
    return 4

class HazState:
    def __init__(self):
        self.t = 0
        self.valu_w = {}; self.trans_w = {}; self.mfma_w = {}; self.mfma_c = {}; self.valu_sw = {}; self.salu_m0 = -99
        self.store_d = {}; self.sdwa_w = {}
    def snapshot(self):
        s = HazState(); s.t = self.t
        for k in ('valu_w', 'trans_w', 'mfma_w', 'mfma_c', 'valu_sw', 'store_d', 'sdwa_w'):
            setattr(s, k, dict(getattr(self, k)))
        s.salu_m0 = self.salu_m0
        return s
    def merge(self, o):
        d = self.t - o.t
        for k in ('valu_w', 'trans_w', 'valu_sw', 'store_d', 'sdwa_w'):
            a = getattr(self, k)
            for r, v in getattr(o, k).items():
                if r not in a or a[r] < v + d: a[r] = v + d
        for k in ('mfma_w', 'mfma_c'):
            a = getattr(self, k)
            for r, v in getattr(o, k).items():
                if r not in a or a[r][0] < v[0] + d: a[r] = (v[0] + d,) + tuple(v[1:])
        self.salu_m0 = max(self.salu_m0, o.salu_m0 + d)

def need_nops(st, i):
    need = 0
    def req(tw, n):
        nonlocal need
        gap = st.t - tw - 1
        if gap < n: need = max(need, n - gap)
    vr = [r for r in i.rd if r[0] in 'va']; vw = [r for r in i.wr if r[0] in 'va']
    sr = [r for r in i.rd if r[0] == 's']
    XD = {4: 8, 8: 12}; XC = {4: 6, 8: 10}; WAR = {4: 3, 8: 7}
    if i.cls == 'mfma':
        for r in vr:
            if r in st.valu_w: req(st.valu_w[r], 2)
        for r in i.ab:
            if r in st.mfma_w: req(st.mfma_w[r][0], XD[st.mfma_w[r][1]])
        key = (tuple(i.srcc), mfma_passes(i.mn))
        for r in i.srcc:
            if r in st.mfma_w:
                tw, p, dk = st.mfma_w[r]
                if dk != key: req(tw, XC[p])
        for r in vw:
            if r in st.mfma_w and r not in i.srcc:
                tw, p, dk = st.mfma_w[r]
                req(tw, XC[p])
        if ('s', 'exec') in st.valu_sw: req(st.valu_sw[('s', 'exec')], 4)
    elif i.cls == 'valu':
        for r in vr + vw:
            if r in st.mfma_w: req(st.mfma_w[r][0], XD[st.mfma_w[r][1]])
        for r in vw:
            if r in st.mfma_c: req(st.mfma_c[r][0], WAR[st.mfma_c[r][1]])
            if r in st.store_d: req(st.store_d[r], 2)
        if not i.mn.startswith(TRANS):
            for r in vr:
                if r in st.trans_w: req(st.trans_w[r], 1)
        for r in vr + vw:
            if r in st.sdwa_w: req(st.sdwa_w[r], 1)
        for r in sr:
            if r in st.valu_sw: req(st.valu_sw[r], 4 if i.mn.startswith(('v_readlane', 'v_writelane', 'v_div_fmas')) else 2)
        if i.mn.startswith(('v_readfirstlane', 'v_readlane')):
            for r in vr:
                if r in st.valu_w: req(st.valu_w[r], 1)
        if i.dpp or i.mn.startswith('v_permlane'):
            for r in vr:
                if r in st.valu_w: req(st.valu_w[r], 2)
    elif i.cls in ('vmem', 'ds'):
        for r in vr + vw:
            if r in st.mfma_w: req(st.mfma_w[r][0], XD[st.mfma_w[r][1]])
        for r in vw:
            if r in st.store_d: req(st.store_d[r], 1)
        for r in vr:
            if r in st.trans_w: req(st.trans_w[r], 1)
        if i.cls == 'vmem':
            for r in sr:
                if r in st.valu_sw: req(st.valu_sw[r], 5)
            if ('s', 'm0') in sr: req(st.salu_m0, 1)
    elif i.cls == 'salu':
        for r in sr:
            if r in st.valu_sw: req(st.valu_sw[r], 1)
        if i.mn.startswith(('s_cbranch_vcc',)) and ('s', 'vcc') in st.valu_sw: req(st.valu_sw[('s', 'vcc')], 1)
    return need

def update(st, i):
    t = st.t
    if i.cls == 'mfma':
        p = mfma_passes(i.mn); key = (tuple(i.wr), p)
        for r in i.wr:
            st.mfma_w[r] = (t, p, key); st.valu_w.pop(r, None)
        for r in i.srcc: st.mfma_c[r] = (t, p)
    elif i.cls == 'valu':
        for r in i.wr:
            if r[0] in 'va':
                st.valu_w[r] = t; st.mfma_w.pop(r, None)
                if i.mn.startswith(TRANS): st.trans_w[r] = t
                else: st.trans_w.pop(r, None)
                if i.sdwa: st.sdwa_w[r] = t
            else: st.valu_sw[r] = t
    elif i.cls == 'salu':
        for r in i.wr:
            if r == ('s', 'm0'): st.salu_m0 = t
            st.valu_sw.pop(r, None)
    for r in i.wide_store: st.store_d[r] = t
    if i.mn == 's_nop': st.t += int(i.text.split()[1]) + 1
    else: st.t += 1

class Asm:
    def __init__(self):
        self.items = []
        self.vm = 0; self.lg = 0
        self.nopcount = 0
    def e(self, text):
        for line in text.strip().split('\n'):
            line = line.strip()
            if not line: continue
            i = Ins(line)
            self.items.append(('i', i))
            if i.cls == 'vmem': self.vm += 1
            if i.cls == 'ds': self.lg += 1
        return None
    def v(self, text):
        self.e(text); return self.vm - 1
    def d(self, text):
        self.e(text); return self.lg - 1
    def wait(self, vm=None, lg=None):
        parts = []
        if vm is not None:
            n = self.vm - 1 - vm; assert 0 <= n, n
            parts.append(f'vmcnt({min(n, 63)})')
        if lg is not None:
            n = self.lg - 1 - lg; assert 0 <= n, n
            parts.append(f'lgkmcnt({min(n, 15)})')
        self.e('s_waitcnt ' + ' '.join(parts))
    def label(self, name): self.items.append(('l', name))
    def c(self, text): self.items.append(('c', text))
    def raw(self, text): self.items.append(('r', text))
    def render(self):
        out = []; st = HazState(); pend = {}
        dead = False
        for kind, x in self.items:
            if kind == 'c': out.append('    ; ' + x)
            elif kind == 'r': out.append(x)
            elif kind == 'l':
                out.append(x + ':')
                ps = pend.pop(x, [])
                if dead and ps:
                    st = ps[0].snapshot(); ps = ps[1:]
                for p in ps: st.merge(p)
                dead = False
            else:
                n = need_nops(st, x)
                while n > 0:
                    k = min(n, 16); out.append(f'    s_nop {k-1}'); st.t += k; n -= k; self.nopcount += 1
                out.append('    ' + x.text)
                update(st, x)
                if x.mn.startswith(('s_cbranch', 's_branch')):
                    tgt = x.text.split()[1]
                    pend.setdefault(tgt, []).append(st.snapshot())
                    if x.mn == 's_branch': dead = True
                if x.mn == 's_endpgm': dead = True
        return '\n'.join(out) + '\n'
```

```python
import sys
sys.path.insert(0, 'work')
from asmlib import Asm

NAME = 'parallel_sum__linear_kernel_hedgehog__dense_activation_squared_relu__prompt'
GEN = 0
F0X, F0W, F3A, F3B, F4, F5 = [4096 + 8192 * k for k in range(6)]
STAMP = 0x10000
KVACC = 0x40000
OX = 0x80000
XN = 0x100000
W1P = 0x380000
W2P = 0x7E0000
AR = 0xA90000
WS_END = AR + 0x800000
WS_BYTES = 268435456
RING = 0; RING_FR = 96
PIM = 98304; PS = 336
VIM = PIM + 128 * PS; VS = 144
WPH = VIM + 128 * VS
ZER = WPH + 2048
LDS_BYTES = 163840
XS = PIM; XSS = 1296
KVS = VIM
WS = 's[4:7]'; SX = 's[8:11]'; SU = 's[12:15]'; SO = 's[40:43]'; SM = 's[44:47]'; SM2 = 's[48:51]'
sI, sJ, sW, sI2, sJ2 = 's52', 's53', 's54', 's55', 's56'
sTO = 's57'; TAG = 's[58:59]'
sU = 's60'
LOG2E = 0x3fb8aa3b

def vr(a, n=1): return f'v{a}' if n == 1 else f'v[{a}:{a+n-1}]'
def ar(a, n=1): return f'a{a}' if n == 1 else f'a[{a}:{a+n-1}]'

class Gen:
    def __init__(self, stamps=False, opts=None):
        self.k = Asm(); self.stamps = stamps; self.nst = 0; self.lab = 0
        self.o = opts or {}
    def stamp(self, name):
        if not self.stamps: return
        n = self.nst; self.nst += 1
        assert n < 15
        self.k.c(f'stamp {n}: {name}')
        self.k.e(f's_memtime s[{72+2*n}:{73+2*n}]')
        self.names = getattr(self, 'names', []) + [name]
    def srd(self, dst, lo, size):
        b = int(dst[2:].split(':')[0])
        self.k.e(f's_mov_b32 s{b}, s{lo}\ns_mov_b32 s{b+1}, s{lo+1}\ns_mov_b32 s{b+2}, {size}\ns_mov_b32 s{b+3}, 0x20000')
    def poll(self, soffs, tmp):
        k = self.k; self.lab += 1; L = f'L_poll{self.lab}'
        k.label(L)
        k.e('s_nop 4')
        for n, so in enumerate(soffs):
            k.e(f'buffer_load_dwordx2 {vr(tmp+2*n,2)}, v5, {WS}, {so} offen sc1')
        k.e('s_waitcnt vmcnt(0)')
        for n, so in enumerate(soffs):
            if n == 0: k.e(f'v_cmp_ne_u64 vcc, {TAG}, {vr(tmp,2)}')
            else:
                k.e(f'v_cmp_ne_u64 s[62:63], {TAG}, {vr(tmp+2*n,2)}')
                k.e('s_or_b64 vcc, vcc, s[62:63]')
        k.e('s_cmp_eq_u64 vcc, 0')
        k.e(f's_cbranch_scc1 {L}_ok')
        k.e(f's_sub_u32 {sTO}, {sTO}, 1')
        k.e(f's_cmp_eq_u32 {sTO}, 0')
        k.e('s_cbranch_scc1 L_end')
        k.e('s_sleep 1')
        k.e(f's_branch {L}')
        k.label(L + '_ok')
    def flag(self, soff, voff_reg):
        k = self.k
        k.e('s_mov_b64 exec, 1')
        k.e(f'buffer_store_dwordx2 v[14:15], {voff_reg}, {WS}, {soff} offen sc1')
        k.e('s_mov_b64 exec, -1')

    def unit_issue(self, ldsbase_s, pad, vo, s_off, s_b, s_c):
        k = self.k
        for m in range(8):
            k.e(f's_add_u32 m0, {ldsbase_s}, {m*(1024+pad)}')
            if m == 0: k.e(f's_mov_b32 s64, {s_off}')
            elif m == 4: k.e(f's_add_u32 s64, {s_off}, {s_b}')
            else: k.e(f's_add_u32 s64, s64, {s_c}')
            k.e(f'buffer_load_dwordx4 {vo}, {SU}, s64 offen lds')
    def unit_store(self, frs, pad, s_dst, regs):
        k = self.k
        ids = []
        for n, (av, imm) in enumerate(frs):
            r = regs + 4 * n
            k.d(f'ds_read_b64_tr_b16 {vr(r,2)}, {av} offset:{imm}')
            ids.append(k.d(f'ds_read_b64_tr_b16 {vr(r+2,2)}, {av} offset:{imm + 4*(1024+pad)}'))
        for n in range(len(frs)):
            k.wait(lg=ids[n])
            so, imm = s_dst[n]
            k.e(f'buffer_store_dwordx4 {vr(regs+4*n,4)}, v2, {WS}, {so} offen offset:{imm} sc1')

    def w2_params(self, s_n):
        k = self.k
        k.e(f's_and_b32 s61, {sJ}, 1\ns_mul_i32 s61, s61, 34\ns_add_u32 s61, s61, {s_n}')
        k.e(f's_lshr_b32 s62, {sJ}, 1')
        k.e(f's_mul_i32 s68, s62, {340*1024}\ns_mul_i32 s63, s61, 5120\ns_add_u32 s68, s68, s63\ns_add_u32 s68, s68, {W2P}')
        k.e('s_lshr_b32 s63, s61, 1\ns_mul_i32 s63, s63, 96\ns_and_b32 s64, s61, 1\ns_lshl_b32 s64, s64, 5\ns_add_u32 s63, s63, s64')
        k.e('s_sub_u32 s64, s61, 32\ns_mul_i32 s64, s64, 96\ns_add_u32 s64, s64, 64')
        k.e('s_cmp_lt_u32 s61, 32\ns_cselect_b32 s65, s63, s64')
        k.e('s_sub_u32 s63, s61, 48\ns_mul_i32 s64, s63, 52\ns_lshr_b32 s64, s64, 8')
        k.e('s_mul_i32 s69, s64, 5\ns_sub_u32 s63, s63, s69')
        k.e('s_mul_i32 s64, s64, 160\ns_mul_i32 s69, s63, 40')
        k.e('s_cmp_eq_u32 s63, 4\ns_cselect_b32 s69, 16, s69\ns_cselect_b32 s70, 1, 4\ns_cselect_b32 s66, 80, 20\ns_cselect_b32 s67, 20, 1')
        k.e('s_add_u32 s64, s64, s69')
        k.e('s_cmp_lt_u32 s61, 48')
        k.e('s_cselect_b32 s65, s65, s64\ns_cselect_b32 s70, 8, s70\ns_cselect_b32 s66, 4, s66\ns_cselect_b32 s67, 1, s67')
        k.e('s_cselect_b32 s12, s30, s22\ns_cselect_b32 s13, s31, s23\ns_cselect_b32 s14, 1966080, 819200'.replace('s_cselect_b32 s14, 1966080, 819200', 's_mov_b32 s14, 819200\ns_cselect_b32 s14, 1966080, s14'))
        k.e('s_mov_b32 s15, 0x20000')
        k.e('s_mul_i32 s65, s65, 1280\ns_mul_i32 s66, s66, 1280\ns_mul_i32 s67, s67, 1280\ns_mul_i32 s70, s70, 1280')
        k.e('s_mul_i32 s62, s62, 160')
        k.e('v_mul_lo_u32 v6, s70, v8')
        k.e('v_lshl_add_u32 v6, v9, 4, v6\nv_add_u32 v6, s62, v6')
        k.e('v_cmp_gt_u32 vcc, 10, v9\nv_cndmask_b32 v6, v7, v6, vcc')

    def phase0(self):
        k = self.k
        k.e('s_cmp_ge_u32 s2, 256\ns_cbranch_scc1 L_end')
        k.e('s_load_dwordx16 s[16:31], s[0:1], 0\ns_load_dwordx8 s[32:39], s[0:1], 64')
        if self.stamps: k.e('s_memrealtime s[70:71]')
        self.stamp('start')
        k.e('v_and_b32 v1, 63, v0\nv_lshrrev_b32 v6, 6, v0\nv_lshlrev_b32 v2, 4, v1')
        k.e(f'v_readfirstlane_b32 {sW}, v6')
        k.e('v_add_u32 v4, 49152, v2\nv_lshlrev_b32 v5, 3, v1')
        k.e('v_lshrrev_b32 v8, 4, v1\nv_and_b32 v9, 15, v1')
        k.e('v_mov_b32 v7, 0x80000000')
        k.e('s_and_b32 s61, s2, 7\ns_lshr_b32 s62, s2, 3')
        k.e(f's_and_b32 s63, s61, 1\ns_lshl_b32 s63, s63, 3\ns_and_b32 s64, s62, 7\ns_add_u32 {sI}, s63, s64')
        k.e(f's_lshr_b32 s63, s61, 1\ns_lshr_b32 s64, s62, 3\ns_lshl_b32 s65, s63, 2\ns_add_u32 {sJ}, s65, s64')
        k.e(f's_and_b32 s65, s63, 1\ns_lshl_b32 s66, {sI}, 1\ns_add_u32 {sI2}, s66, s65')
        k.e(f's_lshr_b32 s65, s63, 1\ns_lshl_b32 s65, s65, 2\ns_add_u32 {sJ2}, s65, s64')
        k.e(f's_lshl_b32 {sU}, {sW}, 4\ns_add_u32 {sU}, {sU}, {sI}')
        k.e(f's_mov_b32 {sTO}, 400000')
        k.e(f's_lshl_b32 s61, {sI}, 7\ns_lshl_b32 s62, {sJ}, 3\ns_add_u32 s61, s61, s62\ns_lshl_b32 s62, {sW}, 1\ns_add_u32 s61, s61, s62\ns_mul_i32 s61, s61, 1280')
        k.e('v_lshrrev_b32 v10, 5, v1\nv_and_b32 v11, 31, v1')
        k.e('v_mul_u32_u24 v12, 1280, v10\nv_lshl_add_u32 v12, v11, 4, v12')
        k.e('v_cmp_gt_u32 vcc, 16, v11\nv_cndmask_b32 v13, v7, v12, vcc\nv_cndmask_b32 v3, 0, 1.0, vcc')
        k.e('s_waitcnt lgkmcnt(0)')
        if self.stamps: k.e('s_mov_b32 s3, s70')
        self.srd(SX, 16, 2621440)
        self.srd(WS, 38, WS_BYTES)
        k.e('s_load_dwordx2 s[58:59], s[38:39], 0')
        x0 = k.v(f'buffer_load_dwordx4 v[16:19], v12, {SX}, s61 offen')
        k.v(f'buffer_load_dwordx4 v[20:23], v12, {SX}, s61 offen offset:512')
        x2 = k.v(f'buffer_load_dwordx4 v[24:27], v13, {SX}, s61 offen offset:1024')
        k.e(f's_mul_i32 s71, {sW}, 20480')
        k.e(f's_cmp_lt_u32 {sU}, 20\ns_cbranch_scc1 L_iq')
        k.e(f's_cmp_lt_u32 {sU}, 40\ns_cbranch_scc1 L_ih')
        vm0 = k.vm
        k.e(f's_sub_u32 s69, {sU}, 40')
        self.w2_params('s69'); k.e('s_mov_b32 s24, s68')
        self.unit_issue('s71', 16, 'v6', 's65', 's66', 's67')
        k.e(f's_cmp_ge_u32 {sU}, 50\ns_cbranch_scc1 L_idone')
        k.e(f's_sub_u32 s69, {sU}, 16')
        self.w2_params('s69'); k.e('s_mov_b32 s25, s68\ns_add_u32 s69, s71, 10240')
        self.unit_issue('s69', 16, 'v6', 's65', 's66', 's67')
        k.e('s_branch L_idone')
        k.label('L_iq')
        self.srd(SU, 18, 2457600)
        k.e('v_mul_u32_u24 v6, 52, v9\nv_lshrrev_b32 v6, 8, v6')
        k.e('v_mul_u32_u24 v10, 1200, v6\nv_lshl_add_u32 v10, v9, 4, v10')
        k.e('v_mul_u32_u24 v6, 30720, v8\nv_add_u32 v6, v6, v10')
        k.e(f's_mul_i32 s62, {sJ}, 80\nv_add_u32 v6, s62, v6')
        k.e('v_cmp_gt_u32 vcc, 15, v9\nv_cndmask_b32 v6, v7, v6, vcc')
        k.e(f's_mul_i32 s65, {sU}, {32*3840}\ns_mov_b32 s66, {4*3840}\ns_mov_b32 s67, 3840')
        self.unit_issue('s71', 16, 'v6', 's65', 's66', 's67')
        k.e('s_branch L_idone')
        k.label('L_ih')
        self.srd(SU, 26, 1966080)
        k.e('v_mul_u32_u24 v6, 24576, v8\nv_lshl_add_u32 v6, v9, 4, v6')
        k.e(f's_mul_i32 s62, {sJ}, 192\nv_add_u32 v6, s62, v6')
        k.e('v_cmp_gt_u32 vcc, 12, v9\nv_cndmask_b32 v6, v7, v6, vcc')
        k.e(f's_sub_u32 s65, {sU}, 20\ns_mul_i32 s65, s65, {32*3072}\ns_mov_b32 s66, {4*3072}\ns_mov_b32 s67, 3072')
        self.unit_issue('s71', 64, 'v6', 's65', 's66', 's67')
        k.label('L_idone')
        k.vm = vm0 + 8
        k.e('v_mov_b32 v28, 0\nv_mov_b32 v29, 0\nv_mov_b32 v30, 0\nv_mov_b32 v31, 0')
        k.e(f's_cmp_lg_u32 {sW}, 0\ns_cbranch_scc1 L_nophi')
        self.srd(SM, 20, 25600)
        k.e(f's_mul_i32 s62, {sJ}, 1600\ns_mov_b32 m0, {WPH}')
        k.e('v_cmp_gt_u32 vcc, 36, v1\nv_cndmask_b32 v6, v7, v2, vcc')
        k.e(f'buffer_load_dwordx4 v2, {SM}, s62 offen lds')
        k.e(f'buffer_load_dwordx4 v6, {SM}, s62 offen offset:1024 lds')
        k.e(f'v_add_u32 v6, {ZER}, v2\nds_write_b128 v6, v[28:31]')
        k.label('L_nophi')
        k.e(f's_sub_u32 s61, {sU}, 20\ns_cmp_ge_u32 s61, 12\ns_cbranch_scc1 L_nozero')
        k.e(f's_lshl_b32 s61, s61, 10\ns_mul_i32 s62, {sJ}, 12288\ns_add_u32 s61, s61, s62\ns_add_u32 s61, s61, {KVACC}')
        k.e(f'buffer_store_dwordx4 v[28:31], v2, {WS}, s61 offen sc1')
        k.label('L_nozero')
        k.vm = vm0 + 8
        self.srd(SO, 34, 2621440)
        k.e('v_lshlrev_b32 v6, 19, v1\nv_cmp_gt_u32 vcc, 38, v1\nv_cndmask_b32 v6, v7, v6, vcc')
        k.v(f'buffer_load_dword v250, v6, {WS}, 0 offen')
        k.v(f'buffer_load_dword v251, v6, {SO}, 0 offen')
        self.srd(SM2, 28, 3072)
        k.e(f's_mul_i32 s62, {sJ}, 192\nv_lshlrev_b32 v6, 4, v8')
        for p in range(3): k.v(f'buffer_load_dwordx4 {vr(236+4*p,4)}, v6, {SM2}, s62 offen offset:{64*p}')
        k.wait(vm=x2)
        self.stamp('x arrived')
        X = 48
        for n in range(12):
            k.e(f'v_lshlrev_b32 {vr(X+2*n)}, 16, {vr(16+n)}\nv_and_b32 {vr(X+2*n+1)}, 0xffff0000, {vr(16+n)}')
        def red32(r, t):
            k.e(f'v_add_f32_dpp {r}, {r}, {r} quad_perm:[1,0,3,2] row_mask:0xf bank_mask:0xf')
            k.e(f'v_add_f32_dpp {r}, {r}, {r} quad_perm:[2,3,0,1] row_mask:0xf bank_mask:0xf')
            k.e(f'v_add_f32_dpp {r}, {r}, {r} row_half_mirror row_mask:0xf bank_mask:0xf')
            k.e(f'v_add_f32_dpp {r}, {r}, {r} row_mirror row_mask:0xf bank_mask:0xf')
            k.e(f'v_mov_b32 {t}, {r}')
            k.e(f'v_permlane16_swap_b32 {r}, {t}')
            k.e(f'v_add_f32 {r}, {r}, {t}')
        k.e(f'v_pk_add_f32 v[32:33], {vr(X,2)}, {vr(X+2,2)}\nv_pk_add_f32 v[34:35], {vr(X+4,2)}, {vr(X+6,2)}')
        for n in range(8, 24, 4):
            k.e(f'v_pk_add_f32 v[32:33], v[32:33], {vr(X+n,2)}\nv_pk_add_f32 v[34:35], v[34:35], {vr(X+n+2,2)}')
        k.e('v_pk_add_f32 v[32:33], v[32:33], v[34:35]\nv_add_f32 v32, v32, v33')
        red32('v32', 'v33')
        k.e('v_mul_f32 v32, 0x3acccccd, v32')
        D = 72
        for n in range(0, 24, 2):
            k.e(f'v_pk_add_f32 {vr(D+n,2)}, {vr(X+n,2)}, v[32:33] op_sel_hi:[1,0] neg_lo:[0,1] neg_hi:[0,1]')
        k.e(f'v_pk_mul_f32 v[34:35], {vr(D,2)}, {vr(D,2)}\nv_pk_mul_f32 v[36:37], {vr(D+16,2)}, {vr(D+16,2)}')
        for n in range(2, 16, 2): k.e(f'v_pk_fma_f32 v[34:35], {vr(D+n,2)}, {vr(D+n,2)}, v[34:35]')
        for n in range(18, 24, 2): k.e(f'v_pk_fma_f32 v[36:37], {vr(D+n,2)}, {vr(D+n,2)}, v[36:37]')
        k.e('v_add_f32 v34, v34, v35\nv_add_f32 v36, v36, v37\nv_fmac_f32 v34, v36, v3')
        red32('v34', 'v35')
        k.e('v_mul_f32 v34, 0x3acccccd, v34')
        k.e('v_cvt_pk_bf16_f32 v33, v32, v34\nv_lshlrev_b32 v32, 16, v33\nv_and_b32 v34, 0xffff0000, v33')
        k.e('v_add_f32 v34, 0x3727c5ac, v34')
        k.e('v_cvt_pk_bf16_f32 v34, v34, v34\nv_lshlrev_b32 v34, 16, v34\nv_sqrt_f32 v34, v34')
        k.e('v_cvt_pk_bf16_f32 v34, v34, v34\nv_lshlrev_b32 v34, 16, v34\nv_rcp_f32 v34, v34')
        for n in range(0, 24, 2):
            k.e(f'v_pk_add_f32 {vr(D+n,2)}, {vr(X+n,2)}, v[32:33] op_sel_hi:[1,0] neg_lo:[0,1] neg_hi:[0,1]')
        for n in range(12): k.e(f'v_cvt_pk_bf16_f32 {vr(16+n)}, {vr(D+2*n)}, {vr(D+2*n+1)}')
        for n in range(12):
            k.e(f'v_lshlrev_b32 {vr(X+2*n)}, 16, {vr(16+n)}\nv_and_b32 {vr(X+2*n+1)}, 0xffff0000, {vr(16+n)}')
        for n in range(0, 24, 2):
            k.e(f'v_pk_mul_f32 {vr(X+n,2)}, {vr(X+n,2)}, v[34:35] op_sel_hi:[1,0]')
        for n in range(12): k.e(f'v_cvt_pk_bf16_f32 {vr(16+n)}, {vr(X+2*n)}, {vr(X+2*n+1)}')
        k.e('v_lshrrev_b32 v10, 5, v1')
        k.e(f's_mul_i32 s61, {sW}, {2*XSS}\ns_add_u32 s61, s61, {XS}')
        k.e(f'v_mul_u32_u24 v6, {XSS}, v10\nv_lshl_add_u32 v6, v11, 4, v6\nv_add_u32 v6, s61, v6')
        k.e('ds_write_b128 v6, v[16:19]\nds_write_b128 v6, v[20:23] offset:512')
        k.e('s_mov_b32 exec_lo, 0xffff\ns_mov_b32 exec_hi, 0xffff\nds_write_b128 v6, v[24:27] offset:1024\ns_mov_b64 exec, -1')
        k.e(f'v_and_b32 v10, 7, v1\nv_lshrrev_b32 v11, 3, v1\nv_mul_u32_u24 v6, {XSS}, v10\nv_lshl_add_u32 v6, v11, 4, v6')
        k.e(f's_lshl_b32 s61, {sW}, 7\ns_add_u32 s61, s61, {XS}\nv_add_u32 v6, s61, v6')
        k.e('v_and_b32 v11, 3, v11\nv_lshlrev_b32 v11, 8, v11\nv_lshl_add_u32 v11, v10, 4, v11\nv_lshrrev_b32 v10, 5, v1\nv_lshl_add_u32 v11, v10, 11, v11')
        k.e(f's_lshl_b32 s61, {sI}, 2\ns_lshr_b32 s62, {sJ}, 2\ns_add_u32 s61, s61, s62\ns_mul_i32 s61, s61, 40960')
        k.e(f's_bfe_u32 s62, {sJ}, 0x10001\ns_lshl_b32 s62, s62, 10\ns_add_u32 s61, s61, s62')
        k.e(f's_and_b32 s62, {sJ}, 1\ns_lshl_b32 s62, s62, 7\ns_add_u32 s61, s61, s62')
        k.e(f's_lshl_b32 s62, {sW}, 12\ns_add_u32 s61, s61, s62\ns_add_u32 s61, s61, {XN}')
        k.e('s_add_u32 s62, s61, 16384\ns_add_u32 s63, s61, 32768')
        k.e('s_waitcnt lgkmcnt(0)\ns_barrier')
        k.e('ds_read_b128 v[16:19], v6\nds_read_b128 v[20:23], v6 offset:512\nds_read_b128 v[24:27], v6 offset:1024')
        k.e('s_mul_i32 s58, s58, 1664525\ns_add_u32 s58, s58, 1013904223\ns_mul_i32 s59, s59, 22695477\ns_add_u32 s59, s59, 1')
        k.e('v_mov_b32 v14, s58\nv_mov_b32 v15, s59')
        k.e('s_waitcnt lgkmcnt(0)')
        k.e(f'buffer_store_dwordx4 v[16:19], v11, {WS}, s61 offen sc1')
        k.e(f'buffer_store_dwordx4 v[20:23], v11, {WS}, s62 offen sc1')
        k.e(f's_cmp_ge_u32 {sW}, 2\ns_cbranch_scc1 L_x2')
        k.e(f'buffer_store_dwordx4 v[24:27], v11, {WS}, s63 offen sc1')
        k.label('L_x2')
        k.e('s_waitcnt vmcnt(2)')
        self.stamp('xn stored, W landed')
        k.e('v_lshrrev_b32 v10, 2, v9\nv_and_b32 v11, 3, v9\nv_lshlrev_b32 v12, 8, v8\nv_add_u32 v12, s71, v12')
        k.e(f's_mul_i32 s61, {sJ}, {280*1024}\ns_add_u32 s61, s61, {W1P}')
        k.e(f's_cmp_lt_u32 {sU}, 20\ns_cbranch_scc1 L_sq')
        k.e(f's_cmp_lt_u32 {sU}, 40\ns_cbranch_scc1 L_sh')
        k.e('v_mad_u32_u24 v12, v10, s[1040], v12'.replace('s[1040]', 'v13') if False else 'v_mul_u32_u24 v13, 1040, v10\nv_add_u32 v12, v12, v13')
        k.e('v_mul_u32_u24 v13, 40, v11\nv_add_u32 v12, v12, v13')
        k.e('s_add_u32 s62, s24, 4096')
        self.unit_store([('v12', 8*t) for t in range(5)], 16, [('s24', 1024*t) for t in range(4)] + [('s62', 0)], 48)
        k.e(f's_cmp_ge_u32 {sU}, 50\ns_cbranch_scc1 L_sdone')
        k.e('s_add_u32 s62, s25, 4096')
        self.unit_store([('v12', 10240 + 8*t) for t in range(5)], 16, [('s25', 1024*t) for t in range(4)] + [('s62', 0)], 80)
        k.e('s_branch L_sdone')
        k.label('L_sq')
        k.e('v_mul_u32_u24 v13, 1040, v10\nv_add_u32 v12, v12, v13')
        k.e('v_add_u32 v13, 2, v11\nv_and_b32 v13, 3, v13\nv_mul_u32_u24 v13, 40, v13\nv_add_u32 v13, v12, v13')
        k.e('v_lshl_add_u32 v6, v11, 3, v12')
        k.e('v_and_b32 v10, 1, v11\nv_mul_u32_u24 v10, 40, v10\nv_add_u32 v10, v12, v10')
        k.e(f's_lshl_b32 s62, {sU}, 13\ns_add_u32 s61, s61, s62\ns_add_u32 s62, s61, 4096')
        self.unit_store([('v13', 8*t) for t in range(5)] + [('v6', 160), ('v6', 200), ('v10', 192)], 16,
                        [('s61', 1024*t) for t in range(4)] + [('s62', 1024*t) for t in range(4)], 48)
        k.e('s_branch L_sdone')
        k.label('L_sh')
        k.e('v_mul_u32_u24 v13, 1088, v10\nv_add_u32 v12, v12, v13\nv_lshl_add_u32 v12, v11, 4, v12')
        k.e(f's_sub_u32 s63, {sU}, 20\ns_lshl_b32 s62, s63, 12\ns_add_u32 s62, s62, s61\ns_add_u32 s62, s62, {160*1024}')
        k.e(f's_lshl_b32 s63, s63, 11\ns_add_u32 s63, s63, s61\ns_add_u32 s63, s63, {240*1024}')
        self.unit_store([('v12', 64*(T>>1) + 8*(T&1)) for T in range(6)], 64,
                        [('s62', 1024*t) for t in range(4)] + [('s63', 1024*t) for t in range(2)], 48)
        k.label('L_sdone')
        k.e(f's_lshl_b32 s61, {sI}, 9\ns_lshl_b32 s62, {sJ}, 5\ns_lshl_b32 s63, {sW}, 3\ns_add_u32 s26, s61, s62\ns_add_u32 s26, s26, s63')
        k.e(f's_lshl_b32 s61, {sJ}, 9\ns_lshl_b32 s62, {sI}, 5\ns_add_u32 s27, s61, s62\ns_add_u32 s27, s27, s63')
        k.e(f's_add_u32 s61, s26, {F0X}\ns_add_u32 s62, s27, {F0W}')
        k.e('v_mov_b32 v6, s61\nv_mov_b32 v10, s62\nv_cmp_eq_u32 vcc, 0, v1\nv_cndmask_b32 v6, v10, v6, vcc')
        k.e('s_waitcnt vmcnt(0)')
        k.e('s_mov_b64 exec, 3')
        k.e(f'buffer_store_dwordx2 v[14:15], v6, {WS}, 0 offen sc1')
        k.e('s_mov_b64 exec, -1')
        self.stamp('p0 flags out')
        k.e('s_barrier')
        k.e('v_lshrrev_b32 v10, 2, v9\nv_and_b32 v11, 3, v9\nv_and_b32 v12, 1, v8')
        k.e(f'v_mul_u32_u24 v12, 800, v12\nv_mul_u32_u24 v13, 40, v10\nv_add3_u32 v12, v12, v13, 0\nv_add_u32 v12, {WPH}, v12')
        k.e(f'v_mov_b32 v13, {ZER}\nv_cmp_eq_u32 vcc, v11, v8\nv_cndmask_b32 v12, v13, v12, vcc')
        for t in range(5):
            for dq in range(5):
                k.e(f'ds_read_b64_tr_b16 {vr(112+12*t+2*dq,2)}, v12 offset:{160*dq+8*t}')
            k.e(f'v_mov_b32 {vr(112+12*t+10)}, 0\nv_mov_b32 {vr(112+12*t+11)}, 0')
        k.e('v_mov_b32 v182, 0\nv_mov_b32 v183, 0\nv_mov_b32 v194, 0\nv_mov_b32 v195, 0')
        k.e('v_mov_b32 v13, 0')

    def ring_dma(self, ss):
        k = self.k
        slot = (16 * ss) % RING_FR
        k.e(f's_add_u32 m0, s28, {slot*1024}')
        k.e(f's_add_u32 s64, s29, {ss*16384}')
        n = 4 if 16 * ss + 16 <= 280 else 2
        last = None
        if n == 4:
            for q in range(4): last = k.v(f'buffer_load_dwordx4 v2, {WS}, s64 offen offset:{q*1024} sc1 lds')
        else:
            k.e(f's_lshl_b32 s65, {sW}, 11\ns_sub_u32 s64, s64, s65\ns_sub_u32 m0, m0, s65')
            for q in range(2): last = k.v(f'buffer_load_dwordx4 v2, {WS}, s64 offen offset:{q*1024} sc1 lds')
        self.dma_id[ss] = last
    def x_load(self, kp):
        k = self.k
        k.e(f's_add_u32 s64, s30, {kp*4096}')
        for q in range(4): last = k.v(f'buffer_load_dwordx4 {ar(16*kp+4*q,4)}, v2, {WS}, s64 offen offset:{q*1024} sc1')
        self.x_id[kp] = last
    def frag_read(self, f):
        k = self.k
        if f % 16 == 0:
            ss = f // 16
            w = self.dma_id[ss]
            if ss in self.x_id: w = max(w, self.x_id[ss])
            k.wait(vm=w); k.e('s_barrier')
            for fn in self.after_bar.pop(ss, []): fn()
            nx = ss + 4
            if ss >= 2 and nx <= 17: self.ring_dma(nx)
        slot = f % RING_FR
        a, off = ('v2', slot * 1024) if slot < 48 else ('v4', (slot - 48) * 1024)
        self.fr_id[f] = k.d(f'ds_read_b128 {vr(16+4*(f%8),4)}, {a} offset:{off}')
    def gemm_pass(self, f0, ntile, acc, cinit, f_end):
        k = self.k
        for ks in range(20):
            for t in range(ntile):
                f = f0 + ks * ntile + t
                k.wait(lg=self.fr_id[f])
                for r in range(2):
                    c = vr(acc(r, t), 4) if ks else cinit(t)
                    k.e(f'v_mfma_f32_16x16x32_bf16 {vr(acc(r,t),4)}, {vr(16+4*(f%8),4)}, {ar(8*ks+4*r,4)}, {c}')
                if f + 8 < f_end: self.frag_read(f + 8)

    def softmax(self, P, E, OUT):
        k = self.k
        k.e(f'v_max3_f32 v32, {vr(P)}, {vr(P+1)}, {vr(P+2)}\nv_min3_f32 v34, {vr(P)}, {vr(P+1)}, {vr(P+2)}')
        k.e(f'v_max3_f32 v33, {vr(P+3)}, {vr(P+4)}, {vr(P+5)}\nv_min3_f32 v35, {vr(P+3)}, {vr(P+4)}, {vr(P+5)}')
        for n, a in enumerate(range(6, 20, 2)):
            m, mi = ('v32', 'v34') if n % 2 == 0 else ('v33', 'v35')
            k.e(f'v_max3_f32 {m}, {m}, {vr(P+a)}, {vr(P+a+1)}\nv_min3_f32 {mi}, {mi}, {vr(P+a)}, {vr(P+a+1)}')
        k.e('v_max_f32 v32, v32, v33\nv_min_f32 v34, v34, v35')
        k.e('v_mul_f32 v32, s66, v32\nv_mul_f32 v34, s66, v34')
        for n in range(0, 20, 2):
            k.e(f'v_pk_fma_f32 {vr(E+n,2)}, {vr(P+n,2)}, s[66:67], v[34:35] op_sel_hi:[1,1,0] neg_lo:[1,0,0] neg_hi:[1,0,0]')
            k.e(f'v_pk_fma_f32 {vr(P+n,2)}, {vr(P+n,2)}, s[66:67], v[32:33] op_sel_hi:[1,1,0] neg_lo:[0,0,1] neg_hi:[0,0,1]')
        for n in range(20): k.e(f'v_exp_f32 {vr(P+n)}, {vr(P+n)}\nv_exp_f32 {vr(E+n)}, {vr(E+n)}')
        k.e(f'v_pk_add_f32 v[32:33], {vr(P,2)}, {vr(P+2,2)}\nv_pk_add_f32 v[34:35], {vr(E,2)}, {vr(E+2,2)}')
        for n in range(4, 20, 2):
            k.e(f'v_pk_add_f32 v[32:33], v[32:33], {vr(P+n,2)}\nv_pk_add_f32 v[34:35], v[34:35], {vr(E+n,2)}')
        k.e('v_add_f32 v32, v32, v33\nv_add_f32 v34, v34, v35\nv_rcp_f32 v32, v32\nv_rcp_f32 v34, v34')
        for n in range(0, 20, 2):
            k.e(f'v_pk_mul_f32 {vr(P+n,2)}, {vr(P+n,2)}, v[32:33] op_sel_hi:[1,0]\nv_pk_mul_f32 {vr(E+n,2)}, {vr(E+n,2)}, v[34:35] op_sel_hi:[1,0]')
        for n in range(10): k.e(f'v_cvt_pk_bf16_f32 {vr(OUT+n)}, {vr(P+2*n)}, {vr(P+2*n+1)}')
        for n in range(10): k.e(f'v_cvt_pk_bf16_f32 {vr(OUT+10+n)}, {vr(E+2*n)}, {vr(E+2*n+1)}')

    def h_epi(self, acc, pairs):
        k = self.k; last = None
        for (T, so) in pairs:
            for r in range(2):
                a = acc(r, T); b = acc(r, T + 1); o = 96 + 4 * r + (8 if T == 2 else 0)
                for x in (a, b):
                    for q in range(4): k.e(f'v_max_f32 {vr(x+q)}, 0, {vr(x+q)}')
                    for q in (0, 2): k.e(f'v_pk_mul_f32 {vr(x+q,2)}, {vr(x+q,2)}, {vr(x+q,2)}')
                k.e(f'v_cvt_pk_bf16_f32 {vr(o)}, {vr(a)}, {vr(a+1)}\nv_cvt_pk_bf16_f32 {vr(o+1)}, {vr(a+2)}, {vr(a+3)}')
                k.e(f'v_cvt_pk_bf16_f32 {vr(o+2)}, {vr(b)}, {vr(b+1)}\nv_cvt_pk_bf16_f32 {vr(o+3)}, {vr(b+2)}, {vr(b+3)}')
                last = k.v(f'buffer_store_dwordx4 {vr(o,4)}, v2, {WS}, {so} offen offset:{r*1024} sc1')
        return last

    def gemm1(self):
        k = self.k
        self.dma_id = {}; self.x_id = {}; self.fr_id = {}; self.after_bar = {}
        k.e(f's_lshl_b32 s28, {sW}, 12')
        k.e(f's_mul_i32 s29, {sJ}, {280*1024}\ns_add_u32 s29, s29, s28\ns_add_u32 s29, s29, {W1P}')
        k.e(f's_lshl_b32 s30, {sI}, 2\ns_add_u32 s30, s30, {sW}\ns_mul_i32 s30, s30, 40960\ns_add_u32 s30, s30, {XN}')
        k.e(f's_lshl_b32 s61, {sI}, 9\ns_add_u32 s65, s61, {F0X}\ns_lshl_b32 s61, {sJ}, 9\ns_add_u32 s66, s61, {F0W}')
        self.poll(['s65', 's66'], 32)
        self.stamp('H0 seen')
        for n in range(6):
            self.x_load(n); self.ring_dma(n)
        for n in range(6, 9): self.x_load(n)
        self.after_bar[1] = [lambda: self.x_load(9)]
        for f in range(8): self.frag_read(f)
        qacc = lambda r, t: (48 + 20 * r + 4 * t) if t < 5 else (88 + 12 * r + 4 * (t - 5))
        self.gemm_pass(0, 8, qacc, lambda t: '0', 160)
        self.stamp('Q done')
        k.e(f's_mov_b32 s66, {LOG2E}\ns_mov_b32 s67, {LOG2E}')
        k.e(f's_mul_i32 s61, {sW}, {32*PS}\ns_add_u32 s61, s61, {PIM}\ns_mul_i32 s62, {sW}, {32*VS}\ns_add_u32 s62, s62, {VIM}')
        k.e(f'v_mul_u32_u24 v6, {PS}, v9\nv_add_u32 v6, s61, v6\nv_mul_u32_u24 v10, 80, v8\nv_add_u32 v10, v6, v10')
        k.e(f'v_mul_u32_u24 v11, {VS}, v9\nv_add_u32 v11, s62, v11\nv_and_b32 v12, 1, v8\nv_lshl_add_u32 v12, v12, 6, v11\nv_lshl_add_u32 v11, v8, 3, v11')
        for r in range(2):
            for n in range(10): k.e(f'v_cvt_pk_bf16_f32 {vr(172+12*r+n)}, {vr(48+20*r+2*n)}, {vr(49+20*r+2*n)}')
        for c in range(3):
            for r in range(2):
                for t in range(5):
                    d = vr(196 + 20 * r + 4 * t, 4)
                    k.e(f'v_mfma_f32_16x16x32_bf16 {d}, {vr(112+12*t+4*c,4)}, {vr(172+12*r+4*c,4)}, {d if c else 0}')
        for r in range(2):
            a = 88 + 12 * r
            k.e(f'v_cvt_pk_bf16_f32 v32, {vr(a)}, {vr(a+1)}\nv_cvt_pk_bf16_f32 v33, {vr(a+2)}, {vr(a+3)}')
            k.e(f'v_cvt_pk_bf16_f32 v34, {vr(a+4)}, {vr(a+5)}\nv_cvt_pk_bf16_f32 v35, {vr(a+6)}, {vr(a+7)}')
            for q in range(4): k.e(f'v_cvt_pk_bf16_f32 {vr(36+2*q)}, {vr(a+8+q)}, 1.0\nv_mov_b32 {vr(37+2*q)}, 0')
            k.e(f'ds_write_b64 v11, v[32:33] offset:{r*16*VS}\nds_write_b64 v11, v[34:35] offset:{r*16*VS+64}')
            k.e(f'ds_write_b128 v12, v[36:39] offset:{r*16*VS+32}\nds_write_b128 v12, v[40:43] offset:{r*16*VS+48}')
            k.e('s_waitcnt lgkmcnt(0)')
        for r in range(2):
            self.softmax(196 + 20 * r, 48, 68 + 20 * r)
            for m in range(5): k.e(f'ds_write_b128 v10, {vr(68+20*r+4*m,4)} offset:{r*16*PS+16*m}')
        k.e('v_lshrrev_b32 v10, 2, v9\nv_lshl_add_u32 v10, v8, 3, v10\nv_and_b32 v11, 3, v9\nv_lshlrev_b32 v11, 3, v11')
        k.e(f's_lshr_b32 s61, {sW}, 1\ns_mul_i32 s61, s61, 80\ns_add_u32 s61, s61, {PIM}\ns_lshl_b32 s62, {sW}, 5\ns_add_u32 s62, s62, {VIM}')
        k.e(f'v_mul_u32_u24 v12, {PS}, v10\nv_add3_u32 v12, v12, v11, s61\nv_mul_u32_u24 v10, {VS}, v10\nv_add3_u32 v10, v10, v11, s62')
        k.e('s_waitcnt lgkmcnt(0)\ns_barrier')
        ids = []
        for ks in range(4):
            b = 112 + 16 * ks
            k.e(f'ds_read_b64_tr_b16 {vr(b,2)}, v10 offset:{ks*32*VS}\nds_read_b64_tr_b16 {vr(b+2,2)}, v10 offset:{ks*32*VS+4*VS}')
            for t in range(3):
                k.e(f'ds_read_b64_tr_b16 {vr(b+4+4*t,2)}, v12 offset:{ks*32*PS+32*t}')
                x = k.d(f'ds_read_b64_tr_b16 {vr(b+6+4*t,2)}, v12 offset:{ks*32*PS+4*PS+32*t}')
            ids.append(x)
            if ks == 1: k.wait(lg=ids[0])
        for ks in range(4):
            b = 112 + 16 * ks
            k.wait(lg=ids[ks])
            for t in range(3):
                d = vr(48 + 4 * t, 4)
                k.e(f'v_mfma_f32_16x16x32_bf16 {d}, {vr(b+4+4*t,4)}, {vr(b,4)}, {d if ks else 0}')
        for f in range(160, 168): self.frag_read(f)
        k.e(f's_mul_i32 s31, {sJ}, 12288\ns_mul_i32 s61, {sW}, 3072\ns_add_u32 s31, s31, s61\ns_add_u32 s31, s31, {KVACC}')
        k.e('v_lshlrev_b32 v3, 2, v1')
        for n in range(8): k.v(f'buffer_atomic_add_f32 {vr(48+n)}, v3, {WS}, s31 offen offset:{n*256}')
        k.e('s_mov_b32 exec_hi, 0')
        for n in range(8, 12): at = k.v(f'buffer_atomic_add_f32 {vr(48+n)}, v3, {WS}, s31 offen offset:{n*256}')
        k.e('s_mov_b64 exec, -1')
        self.stamp('Qe done')
        for n in range(12):
            k.e(f'v_lshlrev_b32 {vr(112+2*n)}, 16, {vr(236+n)}\nv_and_b32 {vr(113+2*n)}, 0xffff0000, {vr(236+n)}')
        k.e(f's_lshl_b32 s61, {sI}, 1\ns_lshr_b32 s62, {sW}, 1\ns_add_u32 s61, s61, s62\ns_lshl_b32 s20, s61, 18\ns_lshl_b32 s23, s61, 14')
        k.e(f's_and_b32 s62, {sW}, 1\ns_lshl_b32 s63, s62, 11\ns_add_u32 s20, s20, s63\ns_add_u32 s20, s20, {AR}')
        k.e(f's_lshl_b32 s63, s62, 9\ns_add_u32 s23, s23, s63\ns_lshl_b32 s63, {sJ}, 10\ns_add_u32 s23, s23, s63\ns_add_u32 s23, s23, {OX}')
        k.e(f's_lshl_b32 s63, {sJ}, 12\ns_add_u32 s21, s20, s63\ns_add_u32 s22, s21, {48*4096}\ns_add_u32 s21, s21, {32*4096}')
        k.e(f's_lshl_b32 s63, {sJ}, 13\ns_add_u32 s20, s20, s63\ns_add_u32 s19, s20, 4096')
        hacc = lambda r, t: 60 + 16 * r + 4 * t
        def f4():
            k.wait(vm=at); k.e(f's_add_u32 s61, s27, {F4}'); self.flag('s61', 'v13')
        self.after_bar.setdefault(14, []).append(f4)
        self.gemm_pass(160, 4, hacc, lambda t: vr(112 + 4 * t, 4), 280)
        self.stamp('Ha done')
        st = self.h_epi(hacc, [(0, 's20'), (2, 's19')])
        hbacc = lambda r, t: 136 + 8 * r + 4 * t
        self.gemm_pass(240, 2, hbacc, lambda t: vr(128 + 4 * t, 4), 280)
        k.wait(vm=st); k.e(f's_add_u32 s61, s26, {F3A}'); self.flag('s61', 'v13')
        self.stamp('Hb done')
        self.st_b = self.h_epi(hbacc, [(0, 's21')])

    def ophase(self):
        k = self.k
        k.e(f's_lshl_b32 s61, {sJ}, 9\ns_add_u32 s65, s61, {F4}')
        self.poll(['s65'], 32)
        k.e(f's_add_u32 s61, s26, {F3B}'); self.flag('s61', 'v13')
        self.stamp('kv seen')
        for n in range(12): x = k.v(f'buffer_load_dword {vr(48+n)}, v3, {WS}, s31 offen offset:{n*256} sc1')
        k.e('v_lshl_add_u32 v10, v8, 3, v6\nv_and_b32 v11, 1, v8\nv_lshl_add_u32 v11, v11, 3, v6')
        for r in range(2):
            for h in range(2):
                b = 60 + 16 * r + 8 * h; o = r * 16 * PS + 160 + 80 * h
                k.e(f'ds_read_b64 {vr(b,2)}, v10 offset:{o}\nds_read_b64 {vr(b+2,2)}, v10 offset:{o+32}\nds_read_b64 {vr(b+4,2)}, v11 offset:{o+64}')
                k.e(f'v_mov_b32 {vr(b+6)}, 0\nv_mov_b32 {vr(b+7)}, 0')
        k.e(f's_mul_i32 s61, {sW}, 1536\ns_add_u32 s61, s61, {KVS}\nv_add_u32 v10, s61, v2\nv_add_u32 v11, s61, v5')
        k.e(f'v_add_u32 v12, {KVS}, v2\nv_add_u32 v7, {KVS}, v5')
        k.wait(vm=x)
        for n in range(6): k.e(f'v_cvt_pk_bf16_f32 {vr(32+n)}, {vr(48+2*n)}, {vr(49+2*n)}')
        k.e('ds_write_b128 v10, v[32:35]\nds_write_b64 v11, v[36:37] offset:1024')
        k.e('s_waitcnt lgkmcnt(0)\ns_barrier')
        for q in range(4):
            b = 92 + 8 * q
            k.e(f'ds_read_b128 {vr(b,4)}, v12 offset:{q*1536}\nds_read_b64 {vr(b+4,2)}, v7 offset:{q*1536+1024}')
            k.e(f'v_mov_b32 {vr(b+6)}, 0\nv_mov_b32 {vr(b+7)}, 0')
        k.e('s_waitcnt lgkmcnt(0)')
        for c in range(2):
            for r in range(2):
                for q in range(4):
                    d = vr(124 + 16 * r + 4 * q, 4)
                    k.e(f'v_mfma_f32_16x16x32_bf16 {d}, {vr(92+8*q+4*c,4)}, {vr(60+16*r+8*(q>>1)+4*c,4)}, {d if c else 0}')
        for r in range(2):
            d = 124 + 16 * r
            k.e(f'v_add_f32 v32, 0x358637bd, {vr(d+5)}\nv_add_f32 v34, 0x358637bd, {vr(d+13)}\nv_rcp_f32 v32, v32\nv_rcp_f32 v34, v34')
            k.e(f'v_pk_mul_f32 {vr(d,2)}, {vr(d,2)}, v[32:33] op_sel_hi:[1,0]\nv_pk_mul_f32 {vr(d+2,2)}, {vr(d+2,2)}, v[32:33] op_sel_hi:[1,0]')
            k.e(f'v_pk_mul_f32 {vr(d+8,2)}, {vr(d+8,2)}, v[34:35] op_sel_hi:[1,0]\nv_pk_mul_f32 {vr(d+10,2)}, {vr(d+10,2)}, v[34:35] op_sel_hi:[1,0]')
            k.e(f'v_mul_f32 {vr(d+4)}, {vr(d+4)}, v32\nv_mul_f32 {vr(d+12)}, {vr(d+12)}, v34')
            o = 36 + 6 * r + (2 if r else 0)
            o = 36 if r == 0 else 44
            k.e(f'v_cvt_pk_bf16_f32 {vr(o)}, {vr(d)}, {vr(d+1)}\nv_cvt_pk_bf16_f32 {vr(o+1)}, {vr(d+2)}, {vr(d+3)}')
            k.e(f'v_cvt_pk_bf16_f32 {vr(o+2)}, {vr(d+8)}, {vr(d+9)}\nv_cvt_pk_bf16_f32 {vr(o+3)}, {vr(d+10)}, {vr(d+11)}')
            k.e(f'v_cvt_pk_bf16_f32 {vr(40+r)}, {vr(d+4)}, {vr(d+12)}')
            k.v(f'buffer_store_dwordx4 {vr(o,4)}, v2, {WS}, s22 offen offset:{r*1024} sc1')
            self.st_o = k.v(f'buffer_store_dword {vr(40+r)}, v3, {WS}, s23 offen offset:{r*256} sc1')
        self.stamp('O done')

    def gemm2(self):
        k = self.k
        ACC = 176
        for s in range(4):
            k.e(f's_add_u32 s61, {sW}, {s}\ns_and_b32 s61, s61, 3\ns_lshl_b32 s62, s61, 10\ns_lshl_b32 s61, s61, 8')
            k.e(f'v_add_u32 {vr(16+s)}, s62, v2\nv_add_u32 {vr(20+s)}, s61, v3')
        k.e(f's_lshl_b32 s28, {sI2}, 18\ns_add_u32 s28, s28, {AR}\ns_lshl_b32 s61, {sW}, 12\ns_add_u32 s29, s28, s61')
        k.e(f's_lshl_b32 s61, {sW}, 14\ns_add_u32 s28, s28, s61\ns_add_u32 s28, s28, {48*4096}')
        k.e(f's_lshl_b32 s30, {sI2}, 14\ns_lshl_b32 s61, {sW}, 12\ns_add_u32 s30, s30, s61\ns_add_u32 s30, s30, {OX}')
        k.e(f's_mul_i32 s24, {sJ2}, {340*1024}\ns_add_u32 s24, s24, {W2P}\ns_mul_i32 s61, {sW}, 25600\ns_add_u32 s25, s24, s61\ns_add_u32 s25, s25, {48*5120}')
        k.e(f's_mul_i32 s61, {sW}, 5120\ns_add_u32 s24, s24, s61')
        self.srd(SM, 32, 1280)
        k.e(f's_lshl_b32 s61, {sI2}, 6\ns_lshl_b32 s62, {sW}, 4\ns_add_u32 s61, s61, s62\ns_mul_i32 s61, s61, 1280\ns_mul_i32 s62, {sJ2}, 160\ns_add_u32 s18, s61, s62')
        k.e('v_mul_u32_u24 v10, 40, v8\nv_mul_u32_u24 v24, 1280, v9\nv_add_u32 v24, v24, v10')
        k.e(f'buffer_load_dwordx4 v[48:51], v24, {SX}, s18 offen\nbuffer_load_dwordx4 v[52:55], v24, {SX}, s18 offen offset:16\nbuffer_load_dwordx2 v[56:57], v24, {SX}, s18 offen offset:32')
        k.e(f'buffer_load_dwordx4 v[60:63], v10, {SM}, s62 offen\nbuffer_load_dwordx4 v[64:67], v10, {SM}, s62 offen offset:16\nbuffer_load_dwordx2 v[68:69], v10, {SM}, s62 offen offset:32')
        k.e(f's_lshl_b32 s61, {sJ2}, 10\ns_add_u32 s65, s61, {F0W}\ns_add_u32 s66, s65, 512\ns_lshl_b32 s61, {sI}, 9\ns_add_u32 s67, s61, {F3A}')
        self.poll(['s65', 's66', 's67'], 32)
        k.e(f's_add_u32 s61, s26, {F5}'); self.flag('s61', 'v13')
        self.stamp('ha seen')
        NB = 7
        done = {}
        def load(n):
            b = 36 * (n % NB)
            if n == 8:
                k.e(f's_lshl_b32 s61, {sI}, 9\ns_add_u32 s65, s61, {F3B}'); self.poll(['s65'], 32)
            if n == 12:
                k.e(f's_lshl_b32 s61, {sI}, 9\ns_add_u32 s65, s61, {F5}'); self.poll(['s65'], 32)
                self.stamp('o seen')
            if n < 12: k.e(f's_add_u32 s64, s24, {n*4*5120}')
            else: k.e(f's_add_u32 s64, s25, {(n-12)*5120}')
            k.e('s_add_u32 s63, s64, 4096')
            for t in range(4): k.v(f'buffer_load_dwordx4 {ar(b+4*t,4)}, v2, {WS}, s64 offen offset:{t*1024} sc1')
            k.v(f'buffer_load_dwordx4 {ar(b+16,4)}, v2, {WS}, s63 offen sc1')
            if n < 16:
                if n < 12: k.e(f's_add_u32 s64, s29, {n*4*4096}')
                else: k.e(f's_add_u32 s64, s28, {(n-12)*4096}')
                for s in range(4): x = k.v(f'buffer_load_dwordx4 {ar(b+20+4*s,4)}, {vr(16+s)}, {WS}, s64 offen sc1')
            else:
                for s in range(4):
                    for p in range(4): x = k.v(f'buffer_load_dword {ar(b+20+4*s+p)}, {vr(20+s)}, {WS}, s30 offen offset:{p*1024} sc1')
            done[n] = x
        for n in range(NB - 1): load(n)
        for n in range(10):
            k.e(f'v_lshlrev_b32 {vr(ACC+2*n)}, 16, {vr(48+n)}\nv_and_b32 {vr(ACC+2*n+1)}, 0xffff0000, {vr(48+n)}')
            k.e(f'v_lshlrev_b32 v32, 16, {vr(60+n)}\nv_and_b32 v33, 0xffff0000, {vr(60+n)}')
            k.e(f'v_pk_add_f32 {vr(ACC+2*n,2)}, {vr(ACC+2*n,2)}, v[32:33]')
        for n in range(17):
            b = 36 * (n % NB)
            if n + NB - 1 < 17: load(n + NB - 1)
            k.wait(vm=done[n])
            for s in range(4):
                for t in range(5):
                    d = vr(ACC + 20 * s + 4 * t, 4)
                    k.e(f'v_mfma_f32_16x16x32_bf16 {d}, {ar(b+4*t,4)}, {ar(b+20+4*s,4)}, {d if (n or s == 0) else 0}')
        self.stamp('G done')
        for s in range(1, 4):
            k.e(f's_add_u32 s61, {sW}, {s}\ns_and_b32 s61, s61, 3\ns_mul_i32 s61, s61, 15360\nv_add_u32 v10, s61, v2')
            for t in range(5): k.e(f'ds_write_b128 v10, {vr(ACC+20*s+4*t,4)} offset:{((s-1)*5+t)*1024}')
        k.e(f's_mul_i32 s61, {sW}, 15360\nv_add_u32 v10, s61, v2')
        k.e('s_waitcnt lgkmcnt(0)\ns_barrier')
        ids = [k.d(f'ds_read_b128 {vr(48+4*n,4)}, v10 offset:{n*1024}') for n in range(15)]
        for n in range(15):
            k.wait(lg=ids[n]); t = n % 5
            k.e(f'v_pk_add_f32 {vr(ACC+4*t,2)}, {vr(ACC+4*t,2)}, {vr(48+4*n,2)}\nv_pk_add_f32 {vr(ACC+4*t+2,2)}, {vr(ACC+4*t+2,2)}, {vr(50+4*n,2)}')
        for n in range(10): k.e(f'v_cvt_pk_bf16_f32 {vr(32+n)}, {vr(ACC+2*n)}, {vr(ACC+2*n+1)}')
        k.e(f'buffer_store_dwordx4 v[32:35], v24, {SO}, s18 offen\nbuffer_store_dwordx4 v[36:39], v24, {SO}, s18 offen offset:16\nbuffer_store_dwordx2 v[40:41], v24, {SO}, s18 offen offset:32')
        k.e(f's_or_b32 s61, s2, {sW}\ns_cmp_lg_u32 s61, 0\ns_cbranch_scc1 L_nogen')
        k.e('s_mov_b32 s61, 0'); self.flag('s61', 'v13')
        k.label('L_nogen')
        if self.stamps:
            k.e('s_waitcnt vmcnt(0)')
            self.stamp('end')
            k.e('s_waitcnt lgkmcnt(0)')
            k.e(f's_lshl_b32 s61, s2, 2\ns_add_u32 s61, s61, {sW}\ns_lshl_b32 s61, s61, 6\ns_add_u32 s61, s61, {STAMP}')
            k.e('s_mov_b64 exec, 1')
            k.e(f'v_mov_b32 v32, s3\nbuffer_store_dword v32, v13, {WS}, s61 offen offset:60')
            for n in range(self.nst):
                k.e(f'v_mov_b32 {vr(33+n)}, s{72+2*n}\nbuffer_store_dword {vr(33+n)}, v13, {WS}, s61 offen offset:{4*n}')
        k.label('L_end')
        k.e('s_endpgm')

    def build(self):
        self.phase0(); self.gemm1(); self.ophase(); self.gemm2()
        body = self.k.render()
        head = open('cdna_kernels/' + NAME + '.s.ref').read().split('; Override launch')[0]
        out = head + f'; @launch grid=(256,1,1) block=(256,1,1) lds={LDS_BYTES}\n'
        out += f'.amdgcn_target "amdgcn-amd-amdhsa--gfx950"\n.text\n.globl {NAME}_kernel\n.p2align 8\n.type {NAME}_kernel,@function\n{NAME}_kernel:\n'
        out += body
        out += f'''.section .rodata,"a"
.p2align 6
.amdhsa_kernel {NAME}_kernel
  .amdhsa_next_free_vgpr 512
  .amdhsa_next_free_sgpr 102
  .amdhsa_accum_offset 256
  .amdhsa_group_segment_fixed_size 0
  .amdhsa_kernarg_size 96
  .amdhsa_user_sgpr_count 2
  .amdhsa_user_sgpr_kernarg_segment_ptr 1
  .amdhsa_system_sgpr_workgroup_id_x 1
.end_amdhsa_kernel
'''
        return out

if __name__ == '__main__':
    out = sys.argv[1]
    g = Gen(stamps='--stamps' in sys.argv)
    open(out, 'w').write(g.build())
    if g.stamps: open(out + '.names', 'w').write('\n'.join(g.names))
    print('nops inserted', g.k.nopcount)
```
